```python
import torch

def _softmax(x, axis=-1):
    return torch.softmax(x, dim=axis)
def _gelu(x):
    return torch.nn.functional.gelu(x, approximate="tanh")
def _silu(x):
    return torch.nn.functional.silu(x)
def _sigmoid(x):
    return torch.sigmoid(x)
def _layernorm(x, axis=-1, eps=1e-5):
    m = x.mean(dim=axis, keepdim=True)
    v = x.var(dim=axis, keepdim=True, unbiased=False)
    return (x - m) / torch.sqrt(v + eps)
def _scatter_add(tgt, idx, src, axis=0):
    return tgt.clone().index_add_(axis, idx, src)
def _segment_sum(src, seg, n):
    out = torch.zeros((n,) + src.shape[1:], dtype=src.dtype)
    return out.index_add_(0, seg, src)
def _pad(x, pw):
    flat = tuple(v for pair in reversed(pw) for v in pair)
    return torch.nn.functional.pad(x, flat)

kernel_name = 'parallel_sum__mha_block_cached__dense_activation_gelu__decode'

def setup_inputs():

    _w = (lambda a: (lambda t: t.to(torch.bfloat16) if t.is_floating_point() else t)(torch.as_tensor(a)))
    def _A_setup():
        B, Sq, D = 8, 1, 512
        H, Sk, Dh = 32, 4096, 128
        return {
            "x": _w((lambda *s: torch.randn(*s, dtype=torch.bfloat16) * 0.05)(B, Sq, D)),
            "k_cache": _w((lambda *s: torch.randn(*s, dtype=torch.bfloat16) * 3.2)(B, H, Sk, Dh)),
            "v_cache": _w((lambda *s: torch.randn(*s, dtype=torch.bfloat16) * 0.8)(B, H, Sk, Dh)),
            "wq": _w((lambda *s: torch.randn(*s, dtype=torch.bfloat16) * 3.2)(D, H * Dh) * (D ** -0.5)),
            "wo": _w((lambda *s: torch.randn(*s, dtype=torch.bfloat16) * 0.8)(H * Dh, D) * ((H * Dh) ** -0.5)),
        }
    _A_in = _A_setup()

    def _B_setup():
        B, S, D, F = 8, 1, 512, 1792
        return {
            "x": _w((lambda *s: torch.randn(*s, dtype=torch.bfloat16) * 0.05)(B, S, D)),
            "w1": _w((lambda *s: torch.randn(*s, dtype=torch.bfloat16) * 3.2)(D, F) * (D ** -0.5)),
            "b1": _w((lambda *s: torch.randn(*s, dtype=torch.bfloat16) * 3.2)(F) * 0.01),
            "w2": _w((lambda *s: torch.randn(*s, dtype=torch.bfloat16) * 0.4)(F, D) * (F ** -0.5)),
            "b2": _w((lambda *s: torch.randn(*s, dtype=torch.bfloat16) * 0.4)(D) * 0.01),
        }
    _B_in = _B_setup()

    return {
        "A_x": _A_in["x"],
        "A_k_cache": _A_in["k_cache"],
        "A_v_cache": _A_in["v_cache"],
        "A_wq": _A_in["wq"],
        "A_wo": _A_in["wo"],
        "B_x": _B_in["x"],
        "B_w1": _B_in["w1"],
        "B_b1": _B_in["b1"],
        "B_w2": _B_in["w2"],
        "B_b2": _B_in["b2"],
    }

def reference(A_x, A_k_cache, A_v_cache, A_wq, A_wo, B_x, B_w1, B_b1, B_w2, B_b2):
    def _A_ref(x, k_cache, v_cache, wq, wo):
        B, Sq, D = x.shape
        H, Dh = 32, 128
        q = (lambda x, *d: x.permute(*d))((x @ wq).reshape(B, Sq, H, Dh), 0, 2, 1, 3)
        scores = torch.einsum("bhqd,bhkd->bhqk", q, k_cache) * (Dh ** -0.5)
        p = _softmax(scores, axis=-1)
        o = torch.einsum("bhqk,bhkd->bhqd", p, v_cache)
        return (lambda x, *d: x.permute(*d))(o, 0, 2, 1, 3).reshape(B, Sq, H * Dh) @ wo

    def _B_ref(x, w1, b1, w2, b2):
        h = torch.einsum("bsd,df->bsf", x, w1) + b1
        h = _gelu(h)
        return torch.einsum("bsf,fd->bsd", h, w2) + b2

    x = A_x
    xn = _layernorm(x, axis=-1)
    return x + _A_ref(xn, A_k_cache, A_v_cache, A_wq, A_wo) + _B_ref(xn, B_w1, B_b1, B_w2, B_b2)
```

```python
import re

REG_RE = re.compile(r'\b([vsa])(\d+)\b|\b([vsa])\[(\d+):(\d+)\]|\b(vcc_lo|vcc_hi|exec_lo|exec_hi|vcc|exec|m0|scc)\b')

def regs_of(tok):
    out = []
    for m in REG_RE.finditer(tok):
        if m.group(1):
            out.append((m.group(1), int(m.group(2))))
        elif m.group(3):
            out += [(m.group(3), i) for i in range(int(m.group(4)), int(m.group(5)) + 1)]
        else:
            g = m.group(6)
            if g == 'vcc': out += [('s', 106), ('s', 107)]
            elif g == 'vcc_lo': out += [('s', 106)]
            elif g == 'vcc_hi': out += [('s', 107)]
            elif g == 'exec_lo': out += [('s', 126)]
            elif g == 'exec_hi': out += [('s', 127)]
            elif g == 'exec': out += [('s', 126), ('s', 127)]
            elif g == 'm0': out += [('s', 124)]
    return out

TRANS = ('v_exp_f32', 'v_log_f32', 'v_rcp_f32', 'v_rsq_f32', 'v_sqrt_f32', 'v_sin_f32', 'v_cos_f32')

class Ins:
    def __init__(self, text):
        self.text = text
        t = text.split(';')[0].strip()
        self.label = t.endswith(':')
        self.op = t.split()[0] if t else ''
        rest = t[len(self.op):].strip()
        ops = []
        depth = 0; cur = ''
        for ch in rest:
            if ch == '[': depth += 1
            if ch == ']': depth -= 1
            if ch == ',' and depth == 0:
                ops.append(cur.strip()); cur = ''
            else:
                cur += ch
        if cur.strip(): ops.append(cur.strip())
        self.mods = ''
        if ops:
            parts = ops[-1].split(None, 1)
            if len(parts) == 2 and not parts[0].endswith(':'):
                ops[-1] = parts[0]; self.mods = parts[1]
        self.ops = ops
        op = self.op
        self.is_valu = op.startswith('v_')
        self.is_mfma = op.startswith('v_mfma')
        self.is_dot = op.startswith('v_dot')
        self.is_trans = op.replace('_e32', '') in TRANS
        self.is_dpp = op.endswith('_dpp')
        self.is_vmem = op.startswith('buffer_') or op.startswith('global_')
        self.is_ds = op.startswith('ds_')
        self.is_salu = op.startswith('s_')
        self.wr = []; self.rd = []
        R = [regs_of(o) for o in ops]
        if self.label or not op or op.startswith('.'):
            return
        if self.is_vmem:
            if 'store' in op:
                for r in R: self.rd += r
            elif 'atomic' in op:
                for r in R: self.rd += r
                if 'sc0' in self.mods: self.wr += R[0]
            else:
                self.wr += R[0]
                for r in R[1:]: self.rd += r
                if 'd16' in op: self.rd += R[0]
        elif self.is_ds:
            if op.startswith('ds_write') or op in ('ds_add_u32',):
                for r in R: self.rd += r
            else:
                self.wr += R[0]
                for r in R[1:]: self.rd += r
        elif op.startswith('v_cmp'):
            self.wr += R[0]
            for r in R[1:]: self.rd += r
        elif op.startswith('v_permlane') and 'swap' in op:
            self.wr += R[0] + R[1]; self.rd += R[0] + R[1]
        elif op in ('s_cmp_eq_u32', 's_cmp_lg_u32', 's_cmp_lt_u32', 's_cmp_ge_u32', 's_cmp_gt_u32', 's_cmp_le_u32', 's_bitcmp1_b32', 's_bitcmp0_b32'):
            for r in R: self.rd += r
        elif op in ('s_waitcnt', 's_barrier', 's_nop', 's_endpgm', 's_sleep', 's_setprio', 's_branch') or op.startswith('s_cbranch'):
            pass
        else:
            if R:
                self.wr += R[0]
                for r in R[1:]: self.rd += r
            if op.startswith('v_fmac') or op.startswith('v_dot2c') or (self.is_dpp):
                self.rd += R[0]
            if op.startswith('v_cndmask') and len(ops) == 3:
                self.rd += regs_of('vcc')
            if op.startswith('v_add_co') or op.startswith('v_addc_co'):
                self.wr += R[1]
        self.dpp_src = R[1] if self.is_dpp else []
        if self.is_mfma:
            self.srcc = R[3]; self.srcab = R[1] + R[2]
    def states(self):
        if self.label or not self.op or self.op.startswith('.'): return 0
        if self.op == 's_nop': return int(self.ops[0], 0) + 1
        return 1

def need(p, c):
    n = 0
    pw = set(p.wr)
    if p.is_valu and not p.is_mfma:
        vw = {r for r in pw if r[0] in 'va'}
        sw = {r for r in pw if r[0] == 's'}
        if vw:
            if c.is_dpp and vw & set(c.dpp_src): n = max(n, 2)
            if c.op.startswith('v_readlane') or c.op.startswith('v_readfirstlane'):
                if vw & set(c.rd): n = max(n, 1)
            if c.is_mfma and vw & set(c.rd): n = max(n, 2)
            if c.op.startswith('v_permlane') and vw & set(c.rd): n = max(n, 2)
            if p.is_trans and c.is_valu and not c.is_trans and vw & set(c.rd): n = max(n, 1)
            if p.is_dot:
                if c.op == p.op:
                    ab = set(regs_of(c.ops[1])) | set(regs_of(c.ops[2]))
                    if vw & ab: n = max(n, 3)
                elif vw & (set(c.rd) | set(c.wr)): n = max(n, 3)
        if sw:
            if c.is_valu and sw & set(c.rd):
                n = max(n, 4 if (c.op.startswith('v_readlane') or c.op.startswith('v_writelane')) else 2)
            if c.is_vmem and sw & set(c.rd): n = max(n, 5)
            if c.is_salu and sw & set(c.rd): n = max(n, 1)
    if p.is_mfma:
        passes = 8 if '32x32' in p.op else 4
        big = {4: 8, 8: 12}[passes]
        if c.is_mfma:
            if pw & set(c.srcab): n = max(n, big)
            if pw & set(c.srcc) and not (set(c.srcc) == pw and c.op == p.op): n = max(n, {4: 6, 8: 10}[passes])
        elif (c.is_valu or c.is_vmem or c.is_ds) and pw & (set(c.rd) | set(c.wr)): n = max(n, big)
        if c.is_valu and not c.is_mfma and set(p.srcc) & set(c.wr): n = max(n, {4: 3, 8: 7}[passes])
    if p.is_vmem and 'store' in p.op and ('x4' in p.op or 'x3' in p.op):
        data = set(regs_of(p.ops[0]))
        if data & set(c.wr): n = max(n, 2)
    if p.is_salu and ('s', 124) in pw and (c.op.startswith('v_writelane') or c.op.startswith('v_readlane') or 'lds' in c.mods): n = max(n, 1)
    return n

class Asm:
    def __init__(self):
        self.ins = []
        self.nops = 0
    def __call__(self, text):
        for line in text.split('\n'):
            if line.strip():
                self.emit(line.strip())
    def emit(self, line):
        c = Ins(line)
        if not (c.label or not c.op or c.op.startswith('.')):
            dist = 0; pad = 0
            for p in reversed(self.ins[-40:]):
                if p.label and getattr(p, 'fence', False): break
                k = need(p, c) if not p.label and p.op and not p.op.startswith('.') else 0
                if k > dist: pad = max(pad, k - dist)
                dist += p.states()
                if dist > 24: break
            while pad > 0:
                k = min(pad, 16)
                self.ins.append(Ins(f's_nop {k-1}')); self.nops += 1
                pad -= k
        self.ins.append(c)
    def label(self, name, safe=True):
        self.ins.append(Ins(name + ':'))
    def check_loop(self, start_idx, end_idx):
        body = self.ins[start_idx:end_idx]
        seq = body + body
        n = len(body)
        for i in range(n, min(2 * n, n + 40)):
            c = seq[i]
            if c.label or not c.op or c.op.startswith('.'): continue
            dist = 0
            for j in range(i - 1, max(-1, i - 40), -1):
                p = seq[j]
                if not p.label and p.op and not p.op.startswith('.'):
                    k = need(p, c)
                    if k > dist:
                        raise RuntimeError(f'back-edge hazard: {p.text} -> {c.text} need {k} have {dist}')
                dist += p.states()
                if dist > 24: break
    def text(self):
        out = []
        for i in self.ins:
            out.append(i.text if i.label else '  ' + i.text)
        return '\n'.join(out) + '\n'
```

```python
import sys
from asmlib import Asm

NAME = "parallel_sum__mha_block_cached__dense_activation_gelu__decode"
HEADER = open("cdna_kernels/%s.s.ref" % NAME).read().split("; Override launch geometry")[0]

def bitrev4(j):
    return ((j & 1) << 3) | ((j & 2) << 1) | ((j & 4) >> 1) | ((j & 8) >> 3)

L_QP = 0x0000
L_HP = 0x0800
L_OP = 0x0C00
L_ST = 0x1400
L_HB = 0x1440
L_VD = 0x1444
LDS_BYTES = 0x1500

def gen(D=6, NT="nt", stamp=False, NCONS=5, rot=0):
    a = Asm()
    K = NAME + "_kernel"
    a(f"""
    s_cmp_ge_u32 s2, 256
    s_cbranch_scc1 L_end
    s_load_dwordx16 s[16:31], s[0:1], 0
    s_load_dwordx8 s[32:39], s[0:1], 64
    s_load_dwordx2 s[40:41], s[0:1], 96
    v_lshrrev_b32 v2, 6, v0
    v_and_b32 v1, 63, v0
    v_readfirstlane_b32 s3, v2
    s_lshr_b32 s4, s2, 5
    s_and_b32 s5, s2, 31
    v_and_b32 v3, 15, v0
    v_lshrrev_b32 v2, 4, v1
    """)
    a("""
    v_and_b32 v26, 1, v3
    v_mov_b32 v27, 0xffff
    v_mov_b32 v28, 0xffff0000
    v_cmp_eq_u32 vcc, 1, v26
    v_lshrrev_b32 v29, 1, v3
    v_cndmask_b32 v26, v27, v28, vcc
    """)
    for r in range(4):
        a(f"v_cmp_eq_u32 vcc, {r}, v29")
        a(f"v_cndmask_b32 v{8+r}, 0, v26, vcc")
    a("""
    s_cmp_ge_u32 s3, 4
    s_cbranch_scc1 L_helper
    """)
    RING = 64
    def kslot(u): return RING + 4 * (u % 32)
    def vslot(u): return RING + 4 * ((u - 256) % 16)
    a(f"""
    s_setprio 2
    v_lshlrev_b32 v60, 4, v1
    s_lshl_b32 s58, s3, 12
    v_add_u32 v60, s58, v60
    s_lshl_b32 s58, s2, 20
    s_lshr_b32 s59, s2, 12
    s_mov_b32 s46, 0x100000
    s_mov_b32 s47, 0x20000
    s_mov_b32 s50, 0x100000
    s_mov_b32 s51, 0x20000
    s_mov_b32 s52, 0
    s_mov_b32 s54, 0xcccccccc
    s_mov_b32 s55, 0xcccccccc
    s_mov_b32 s56, 0xaaaaaaaa
    s_mov_b32 s57, 0xaaaaaaaa
    s_waitcnt lgkmcnt(0)
    s_add_u32 s44, s18, s58
    s_addc_u32 s45, s19, s59
    s_add_u32 s48, s20, s58
    s_addc_u32 s49, s21, s59
    """)
    state = {"issued": -1}
    def issue(u, wait=True):
        if wait:
            a(f"s_waitcnt vmcnt({D-1})")
        uu = u % 256
        if uu % 4 == 0 and u != 0:
            if u == 256:
                a("s_mov_b32 s52, 0")
            else:
                a("s_add_u32 s52, s52, 0x4000")
        if u < 256:
            s = kslot(u); srd = "s[44:47]"
        else:
            s = vslot(u); srd = "s[48:51]"
        a(f"buffer_load_dwordx4 v[{s}:{s+3}], v60, {srd}, s52 offen offset:{(uu % 4) * 1024} {NT}")
    for u in range(31):
        issue(u, wait=(u >= D))
    a("s_barrier")
    a("v_lshlrev_b32 v61, 5, v3")
    for w in range(4):
        a(f"ds_read_b128 v[{24+8*w}:{27+8*w}], v61 offset:{L_QP + w*512}")
        a(f"ds_read_b128 v[{28+8*w}:{31+8*w}], v61 offset:{L_QP + w*512 + 16}")
    a("s_waitcnt lgkmcnt(0)")
    for i in range(8):
        a(f"v_add_f32 v{24+i}, v{24+i}, v{32+i}")
        a(f"v_add_f32 v{40+i}, v{40+i}, v{48+i}")
    for i in range(8):
        a(f"v_add_f32 v{24+i}, v{24+i}, v{40+i}")
    for i in range(4):
        a(f"v_cvt_pk_bf16_f32 v{4+i}, v{24+2*i}, v{25+2*i}")
    AR = [24, 25, 26, 27]; BR = [28, 29]; CR = [30, 31]; ER = [32, 33]; T0, T1 = 52, 53
    S0 = 34
    SCALE = "0x3db504f3"
    def kdots(c):
        s = kslot(c); d = AR[c % 4]
        a(f"v_dot2_f32_bf16 v{d}, v{s}, v4, 0")
        a(f"v_dot2_f32_bf16 v{d}, v{s+1}, v5, v{d}")
        a(f"v_dot2_f32_bf16 v{d}, v{s+2}, v6, v{d}")
        a(f"v_dot2_f32_bf16 v{d}, v{s+3}, v7, v{d}")
    def kdeferred(c):
        j = c - 1
        if j % 2 == 1:
            B = BR[(j >> 1) & 1]
            a(f"v_add_f32_dpp v{B}, v{AR[(j-1)%4]}, v{AR[(j-1)%4]} row_ror:8 row_mask:0xf bank_mask:0x3")
            a(f"v_add_f32_dpp v{B}, v{AR[j%4]}, v{AR[j%4]} row_ror:8 row_mask:0xf bank_mask:0xc")
        j = c - 2
        if j % 4 == 3:
            C = CR[(j >> 2) & 1]
            a(f"v_add_f32_dpp v{C}, v{BR[0]}, v{BR[0]} row_shl:4 row_mask:0xf bank_mask:0x5")
            a(f"v_add_f32_dpp v{C}, v{BR[1]}, v{BR[1]} row_shr:4 row_mask:0xf bank_mask:0xa")
        j = c - 4
        if j % 8 == 7:
            E = ER[(j >> 3) & 1]
            a(f"v_add_f32_dpp v{T0}, v{CR[0]}, v{CR[0]} quad_perm:[2,3,0,1] row_mask:0xf bank_mask:0xf")
            a(f"v_add_f32_dpp v{T1}, v{CR[1]}, v{CR[1]} quad_perm:[2,3,0,1] row_mask:0xf bank_mask:0xf")
            a(f"v_cndmask_b32 v{E}, v{T0}, v{T1}, s[54:55]")
        j = c - 6
        if j % 16 == 15:
            blk = j >> 4
            dst = S0 + 15 if (blk & 1) else S0 + 14
            a(f"v_add_f32_dpp v{T0}, v{ER[0]}, v{ER[0]} quad_perm:[1,0,3,2] row_mask:0xf bank_mask:0xf")
            a(f"v_add_f32_dpp v{T1}, v{ER[1]}, v{ER[1]} quad_perm:[1,0,3,2] row_mask:0xf bank_mask:0xf")
            a(f"v_cndmask_b32 v{T0}, v{T0}, v{T1}, s[56:57]")
            a(f"v_cvt_pk_bf16_f32 v{T0}, v{T0}, v{T0}")
            a(f"v_lshlrev_b32 v{T0}, 16, v{T0}")
            a(f"v_mul_f32 v{T0}, {SCALE}, v{T0}")
            a(f"v_cvt_pk_bf16_f32 v{T0}, v{T0}, v{T0}")
            a(f"v_lshlrev_b32 v{dst}, 16, v{T0}")
        k = c % 32
        if 7 <= k < 14:
            i = (k - 7) * 2
            a(f"v_mov_b32 v{S0+i}, v{S0+i+2}")
            a(f"v_mov_b32 v{S0+i+1}, v{S0+i+3}")
    a("s_mov_b32 s53, 0")
    a.label("L_kloop")
    i0 = len(a.ins)
    for c in range(32):
        kdots(c)
        kdeferred(c)
        issue(c + 31 + 32)
    a("""
    s_add_u32 s53, s53, 1
    s_cmp_lt_u32 s53, 7
    s_cbranch_scc1 L_kloop
    """)
    a.check_loop(i0, len(a.ins))
    work = []
    for c in range(224, 256):
        work.append(("k", c))
    for c in range(256, 262):
        work.append(("kd", c))
    def softmax_chunks():
        ch = []
        S = [S0 + i for i in range(16)]
        M = 50
        c1 = []
        c1.append(f"v_max3_f32 v{M}, v{S[0]}, v{S[1]}, v{S[2]}")
        for i in range(3, 15, 2):
            c1.append(f"v_max3_f32 v{M}, v{M}, v{S[i]}, v{S[i+1]}")
        c1.append(f"v_max_f32 v{M}, v{M}, v{S[15]}")
        for dpp in ("quad_perm:[1,0,3,2] row_mask:0xf", "quad_perm:[2,3,0,1] row_mask:0xf", "row_half_mirror row_mask:0xf", "row_mirror row_mask:0xf",
                    "row_bcast:15 row_mask:0xa", "row_bcast:31 row_mask:0xc"):
            c1.append(f"v_max_f32_dpp v{M}, v{M}, v{M} {dpp} bank_mask:0xf")
        c1.append(f"v_readlane_b32 s60, v{M}, 63")
        ch.append(c1)
        Lr = 54
        for q in range(4):
            c2 = []
            for i in range(4*q, 4*q+4):
                c2.append(f"v_subrev_f32 v{S[i]}, s60, v{S[i]}")
            for i in range(4*q, 4*q+4):
                c2.append(f"v_mul_f32 v{S[i]}, 0x3fb8aa3b, v{S[i]}")
            for i in range(4*q, 4*q+4):
                c2.append(f"v_exp_f32 v{S[i]}, v{S[i]}")
            for i in range(4*q, 4*q+4):
                if i == 0: c2.append(f"v_mov_b32 v{Lr}, v{S[0]}")
                else: c2.append(f"v_add_f32 v{Lr}, v{Lr}, v{S[i]}")
            for i in range(4*q, 4*q+4):
                c2.append(f"v_cvt_pk_bf16_f32 v{S[i]}, v{S[i]}, v{S[i]}")
            ch.append(c2)
        c3 = []
        for dpp in ("quad_perm:[1,0,3,2] row_mask:0xf", "quad_perm:[2,3,0,1] row_mask:0xf", "row_half_mirror row_mask:0xf", "row_mirror row_mask:0xf",
                    "row_bcast:15 row_mask:0xa", "row_bcast:31 row_mask:0xc"):
            c3.append(f"v_add_f32_dpp v{Lr}, v{Lr}, v{Lr} {dpp} bank_mask:0xf")
        c3.append(f"v_readlane_b32 s61, v{Lr}, 63")
        c3.append(f"s_lshl_b32 s62, s3, 3")
        c3.append(f"v_mov_b32 v56, s60")
        c3.append(f"v_mov_b32 v57, s61")
        c3.append(f"v_mov_b32 v55, s62")
        c3.append(f"ds_write_b64 v55, v[56:57] offset:{L_ST}")
        c3 += ["v_mov_b32 v20, 0", "v_mov_b32 v21, 0", "v_mov_b32 v22, 0", "v_mov_b32 v23, 0"]
        ch.append(c3)
        return ch
    for ch in softmax_chunks():
        work.append(("sm", ch))
    arrived = 254 - D
    consumed = set(range(224))
    wi = 0
    def run_work(budget):
        nonlocal wi
        n = 0
        while wi < len(work) and n < budget:
            kind, x = work[wi]
            if kind == "k":
                if x > arrived: break
                kdots(x); kdeferred(x); consumed.add(x); n += 1
            elif kind == "kd":
                kdeferred(x); n += 0.5
            else:
                for l in x: a(l)
                n += NCONS // 2 + 1
            wi += 1
    for u in range(255, 271):
        run_work(NCONS)
        if u >= 256:
            assert (u - 32) in consumed, (u, "slot not free")
        issue(u)
        arrived = u - D
    assert arrived >= 255
    run_work(1000)
    assert wi == len(work)
    PC = 55
    def vstep(c, do_issue, waitn=None, shift=True):
        j = (c - 256) % 16
        A = 12 if (c % 2 == 0) else 16
        if j == 0:
            a(f"v_mov_b32 v{PC}, v{S0}")
        if shift and 1 <= j <= 15:
            a(f"v_mov_b32 v{S0+j-1}, v{S0+j}")
        for r in range(4):
            a(f"v_and_b32_dpp v{A+r}, v{PC}, v{8+r} row_newbcast:{bitrev4(j)} row_mask:0xf bank_mask:0xf")
        if do_issue:
            issue(c + 15)
        elif waitn is not None:
            a(f"s_waitcnt vmcnt({waitn})")
        s = vslot(c)
        a(f"v_mfma_f32_16x16x32_bf16 v[20:23], v[{A}:{A+3}], v[{s}:{s+3}], v[20:23]")
    a("s_mov_b32 s53, 0")
    a.label("L_vloop")
    i0 = len(a.ins)
    for c in range(256, 272):
        vstep(c, True)
    a("""
    s_add_u32 s53, s53, 1
    s_cmp_lt_u32 s53, 15
    s_cbranch_scc1 L_vloop
    """)
    a.check_loop(i0, len(a.ins))
    for c in range(496, 512):
        if c == 496:
            vstep(c, True, shift=False)
        else:
            outstanding_allowed = 511 - c
            vstep(c, False, waitn=min(outstanding_allowed, D) if outstanding_allowed < D else None, shift=False)
    a(f"""
    v_lshlrev_b32 v52, 5, v3
    v_lshl_add_u32 v52, v2, 4, v52
    s_lshl_b32 s62, s3, 9
    v_add_u32 v52, s62, v52
    s_mov_b32 exec_hi, 0
    ds_write_b128 v52, v[20:23] offset:{L_OP}
    s_waitcnt lgkmcnt(0)
    s_barrier
    s_endpgm
    """)
    a.label("L_helper")
    BUF = 64
    W2B = 192
    def srd(n, lo, size):
        a(f"s_mov_b32 s{n}, s{lo}\ns_mov_b32 s{n+1}, s{lo+1}\ns_mov_b32 s{n+2}, {size}\ns_mov_b32 s{n+3}, 0x20000")
    a("""
    s_sub_u32 s6, s3, 4
    s_nop 0
    """)
    a("""
    s_lshl_b32 s84, s4, 10
    v_lshl_add_u32 v30, v1, 4, s84
    s_lshl_b32 s85, s6, 8
    s_add_u32 s85, s85, s84
    v_lshl_add_u32 v31, v1, 1, s85
    s_lshl_b32 s86, s6, 7
    v_lshl_add_u32 v33, v2, 4, s86
    v_lshlrev_b32 v32, 13, v33
    v_lshl_add_u32 v32, v3, 4, v32
    s_lshl_b32 s87, s5, 8
    v_add_u32 v32, s87, v32
    s_waitcnt lgkmcnt(0)
    """)
    srd(44, 16, 8192)
    srd(48, 22, 4194304)
    a("""
    buffer_load_dwordx4 v[36:39], v30, s[44:47], 0 offen
    buffer_load_ushort v24, v31, s[44:47], 0 offen
    buffer_load_ushort v25, v31, s[44:47], 0 offen offset:128
    """)
    def rowoff(jj): return 64 * (jj >> 4) + (jj & 15)
    for jj in range(32):
        a(f"s_mov_b32 s88, {rowoff(jj) * 8192}")
        a(f"buffer_load_dwordx4 v[{BUF+4*jj}:{BUF+4*jj+3}], v32, s[48:51], s88 offen")
    srd(52, 28, 512 * 1792 * 2)
    srd(56, 32, 1792 * 512 * 2)
    srd(60, 24, 4194304)
    srd(64, 30, 3584)
    srd(68, 34, 1024)
    srd(72, 40, 1 << 21)
    srd(76, 36, 8192)
    srd(80, 38, 256)
    a("""
    s_movk_i32 s88, 3584
    v_mul_lo_u32 v34, v33, s88
    v_lshl_add_u32 v34, v3, 4, v34
    s_mul_i32 s88, s5, 112
    v_add_u32 v34, s88, v34
    """)
    a(f"""
    v_mov_b32 v26, 0
    ds_write_b32 v26, v26 offset:{L_HB}
    s_waitcnt vmcnt(32)
    """)
    for i in range(4):
        a(f"v_lshlrev_b32 v{40+2*i}, 16, v{36+i}")
        a(f"v_and_b32 v{41+2*i}, 0xffff0000, v{36+i}")
    a("""
    v_add_f32 v26, v40, v41
    v_add_f32 v27, v42, v43
    v_add_f32 v28, v44, v45
    v_add_f32 v29, v46, v47
    v_add_f32 v26, v26, v27
    v_add_f32 v28, v28, v29
    v_add_f32 v26, v26, v28
    """)
    def wsum(v, s):
        for dpp in ("quad_perm:[1,0,3,2] row_mask:0xf", "quad_perm:[2,3,0,1] row_mask:0xf", "row_half_mirror row_mask:0xf", "row_mirror row_mask:0xf",
                    "row_bcast:15 row_mask:0xa", "row_bcast:31 row_mask:0xc"):
            a(f"v_add_f32_dpp v{v}, v{v}, v{v} {dpp} bank_mask:0xf")
        a(f"v_readlane_b32 s{s}, v{v}, 63")
    wsum(26, 89)
    a("""
    v_mov_b32 v27, s89
    v_mul_f32 v27, 0x3b000000, v27
    """)
    for i in range(8):
        a(f"v_sub_f32 v{40+i}, v{40+i}, v27")
    a("v_mul_f32 v26, v40, v40")
    for i in range(1, 8):
        a(f"v_fmac_f32 v26, v{40+i}, v{40+i}")
    wsum(26, 89)
    a("""
    v_mov_b32 v28, s89
    v_mul_f32 v28, 0x3b000000, v28
    v_cvt_pk_bf16_f32 v29, v27, v28
    v_lshlrev_b32 v27, 16, v29
    v_and_b32 v28, 0xffff0000, v29
    v_add_f32 v28, 0x3727c5ac, v28
    v_cvt_pk_bf16_f32 v28, v28, v28
    v_lshlrev_b32 v28, 16, v28
    v_sqrt_f32 v28, v28
    v_lshlrev_b32 v24, 16, v24
    v_lshlrev_b32 v25, 16, v25
    v_cvt_pk_bf16_f32 v28, v28, v28
    v_lshlrev_b32 v28, 16, v28
    v_rcp_f32 v28, v28
    v_sub_f32 v24, v24, v27
    v_sub_f32 v25, v25, v27
    v_cvt_pk_bf16_f32 v29, v24, v25
    v_lshlrev_b32 v24, 16, v29
    v_and_b32 v25, 0xffff0000, v29
    v_mul_f32 v24, v24, v28
    v_mul_f32 v25, v25, v28
    v_cvt_pk_bf16_f32 v24, v24, v24
    v_cvt_pk_bf16_f32 v25, v25, v25
    """)
    def gemv(n, xreg, buf, waitfn, after=None):
        for jj in range(n):
            A = 12 if jj % 2 == 0 else 16
            for r in range(4):
                a(f"v_and_b32_dpp v{A+r}, v{xreg(jj)}, v{8+r} row_newbcast:{jj & 15} row_mask:0xf bank_mask:0xf")
            w = waitfn(jj)
            if w is not None: a(f"s_waitcnt vmcnt({w})")
            s = buf + 4 * jj
            a(f"v_mfma_f32_16x16x32_bf16 v[20:23], v[{A}:{A+3}], v[{s}:{s+3}], {'0' if jj == 0 else 'v[20:23]'}")
            if after: after(jj)
    gemv(32, lambda jj: 24 + (jj >> 4), BUF, lambda jj: 31 - jj)
    a(f"""
    v_lshlrev_b32 v35, 5, v3
    v_lshl_add_u32 v35, v2, 4, v35
    s_lshl_b32 s88, s6, 9
    v_add_u32 v26, s88, v35
    s_mov_b32 exec_hi, 0
    ds_write_b128 v26, v[20:23] offset:{L_QP}
    s_mov_b64 exec, -1
    s_waitcnt lgkmcnt(0)
    s_barrier
    """)
    a("""
    v_cmp_gt_u32 vcc, 7, v3
    s_and_b64 exec, exec, vcc
    """)
    for jj in range(32):
        a(f"s_mov_b32 s88, {rowoff(jj) * 3584}")
        a(f"buffer_load_dwordx4 v[{BUF+4*jj}:{BUF+4*jj+3}], v34, s[52:55], s88 offen")
    a("s_mov_b64 exec, -1")
    a("""
    v_mul_u32_u24 v26, 14, v2
    s_mul_i32 s88, s5, 56
    v_add_u32 v26, s88, v26
    v_add_u32 v27, v26, v3
    v_lshlrev_b32 v27, 1, v27
    v_lshlrev_b32 v26, 10, v26
    v_lshl_add_u32 v26, v3, 4, v26
    s_lshl_b32 s88, s6, 8
    v_add_u32 v26, s88, v26
    buffer_load_ushort v48, v27, s[64:67], 0 offen
    """)
    for jj in range(14):
        a(f"s_mov_b32 s88, {jj * 1024}")
        a(f"buffer_load_dwordx4 v[{W2B+4*jj}:{W2B+4*jj+3}], v26, s[56:59], s88 offen")
    a("""
    v_and_b32 v49, 31, v1
    s_lshl_b32 s88, s6, 8
    v_lshl_add_u32 v50, v49, 3, s88
    v_add_u32 v51, s84, v50
    s_mov_b32 exec_hi, 0
    buffer_load_dwordx2 v[52:53], v51, s[44:47], 0 offen
    s_not_b64 exec, exec
    buffer_load_dwordx2 v[52:53], v50, s[68:71], 0 offen
    s_mov_b64 exec, -1
    """)
    NAFTER = 1 + 14 + 2
    a("""
    s_lshl_b32 s88, s5, 7
    v_lshl_add_u32 v54, v2, 4, s88
    v_lshlrev_b32 v54, 10, v54
    v_lshl_add_u32 v54, v3, 4, v54
    s_lshl_b32 s88, s6, 8
    v_add_u32 v54, s88, v54
    """)
    gemv(32, lambda jj: 24 + (jj >> 4), BUF, lambda jj: 31 - jj + NAFTER)
    a(f"""
    s_lshl_b32 s88, s6, 8
    v_add_u32 v26, s88, v35
    v_cmp_gt_u32 vcc, 7, v3
    s_mov_b32 exec_lo, vcc_lo
    s_mov_b32 exec_hi, 0
    ds_write_b128 v26, v[20:23] offset:{L_HP}
    s_mov_b64 exec, -1
    """)
    for jj in range(32):
        a(f"s_mov_b32 s88, {rowoff(jj) * 1024}")
        a(f"buffer_load_dwordx4 v[{BUF+4*jj}:{BUF+4*jj+3}], v54, s[60:63], s88 offen")
    a(f"""
    v_mov_b32 v26, 0
    v_mov_b32 v27, 1
    s_waitcnt lgkmcnt(0)
    s_mov_b64 exec, 1
    ds_add_u32 v26, v27 offset:{L_HB}
    s_mov_b64 exec, -1
    """)
    a.label("L_hb")
    a(f"""
    s_sleep 1
    ds_read_b32 v27, v26 offset:{L_HB}
    s_waitcnt lgkmcnt(0)
    v_readfirstlane_b32 s88, v27
    s_cmp_lt_u32 s88, 4
    s_cbranch_scc1 L_hb
    """)
    a(f"""
    v_mul_u32_u24 v26, 14, v2
    v_add_lshl_u32 v26, v26, v3, 2
    ds_read_b32 v40, v26 offset:{L_HP}
    ds_read_b32 v41, v26 offset:{L_HP+256}
    ds_read_b32 v42, v26 offset:{L_HP+512}
    ds_read_b32 v43, v26 offset:{L_HP+768}
    s_waitcnt lgkmcnt(0)
    v_add_f32 v40, v40, v41
    v_add_f32 v42, v42, v43
    v_add_f32 v40, v40, v42
    v_cvt_pk_bf16_f32 v40, v40, v40
    v_lshlrev_b32 v40, 16, v40
    s_waitcnt vmcnt(48)
    v_lshlrev_b32 v48, 16, v48
    v_add_f32 v40, v40, v48
    v_cvt_pk_bf16_f32 v40, v40, v40
    v_lshlrev_b32 v40, 16, v40
    v_mul_f32 v41, v40, v40
    v_mul_f32 v41, v41, v40
    v_mov_b32 v42, 0x3d372713
    v_fma_f32 v41, v41, v42, v40
    v_mul_f32 v41, 0xc0135761, v41
    v_exp_f32 v41, v41
    v_add_f32 v41, 1.0, v41
    v_rcp_f32 v41, v41
    v_mul_f32 v40, v40, v41
    v_cvt_pk_bf16_f32 v40, v40, v40
    """)
    gemv(14, lambda jj: 40, W2B, lambda jj: (13 - jj) + 2 + 32)
    a("""
    s_lshl_b32 s88, s2, 11
    s_lshl_b32 s89, s6, 9
    s_add_u32 s88, s88, s89
    v_add_u32 v55, s88, v35
    s_mov_b32 s90, 0x80000
    s_mov_b32 exec_hi, 0
    buffer_store_dwordx4 v[20:23], v55, s[72:75], s90 offen sc1
    s_mov_b64 exec, -1
    v_lshlrev_b32 v26, 2, v1
    v_mov_b32 v27, 0
    s_barrier
    """)
    for w in range(4):
        a(f"ds_read2st64_b32 v[{40+2*w}:{41+2*w}], v26 offset0:{(L_OP + w*512)//256} offset1:{(L_OP + w*512)//256 + 1}")
    a(f"""
    ds_read_b128 v[28:31], v27 offset:{L_ST}
    ds_read_b128 v[56:59], v27 offset:{L_ST+16}
    s_waitcnt lgkmcnt(0)
    v_max3_f32 v32, v28, v30, v56
    v_max_f32 v32, v32, v58
    v_sub_f32 v28, v28, v32
    v_sub_f32 v30, v30, v32
    v_sub_f32 v56, v56, v32
    v_sub_f32 v58, v58, v32
    v_mul_f32 v28, 0x3fb8aa3b, v28
    v_mul_f32 v30, 0x3fb8aa3b, v30
    v_mul_f32 v56, 0x3fb8aa3b, v56
    v_mul_f32 v58, 0x3fb8aa3b, v58
    v_exp_f32 v28, v28
    v_exp_f32 v30, v30
    v_exp_f32 v56, v56
    v_exp_f32 v58, v58
    v_mul_f32 v32, v28, v29
    v_fmac_f32 v32, v30, v31
    v_fmac_f32 v32, v56, v57
    v_fmac_f32 v32, v58, v59
    v_rcp_f32 v32, v32
    v_mul_f32 v24, v40, v28
    v_mul_f32 v25, v41, v28
    v_fmac_f32 v24, v42, v30
    v_fmac_f32 v25, v43, v30
    v_fmac_f32 v24, v44, v56
    v_fmac_f32 v25, v45, v56
    v_fmac_f32 v24, v46, v58
    v_fmac_f32 v25, v47, v58
    v_mul_f32 v24, v24, v32
    v_mul_f32 v25, v25, v32
    v_cvt_pk_bf16_f32 v24, v24, v24
    v_cvt_pk_bf16_f32 v25, v25, v25
    s_waitcnt vmcnt(0)
    """)
    gemv(32, lambda jj: 24 + (jj >> 4), BUF, lambda jj: None)
    a(f"""
    s_mov_b32 exec_hi, 0
    buffer_store_dwordx4 v[20:23], v55, s[72:75], 0 offen sc1
    s_mov_b64 exec, -1
    s_waitcnt vmcnt(0)
    s_barrier
    s_cmp_lg_u32 s6, 0
    s_cbranch_scc1 L_noatom
    s_lshl_b32 s88, s4, 5
    v_mov_b32 v26, s88
    v_mov_b32 v28, 1
    s_mov_b64 exec, 1
    buffer_atomic_add v28, v26, s[80:83], 0 offen sc0
    s_waitcnt vmcnt(0)
    ds_write_b32 v27, v28 offset:{L_VD}
    s_mov_b64 exec, -1
    s_waitcnt lgkmcnt(0)
    """)
    a.label("L_noatom")
    a(f"""
    s_barrier
    ds_read_b32 v28, v27 offset:{L_VD}
    v_lshrrev_b32 v29, 5, v1
    v_lshlrev_b32 v29, 19, v29
    v_lshl_add_u32 v29, v49, 4, v29
    s_lshl_b32 s88, s4, 16
    s_lshl_b32 s89, s6, 9
    s_add_u32 s88, s88, s89
    v_add_u32 v29, s88, v29
    s_waitcnt lgkmcnt(0)
    v_readfirstlane_b32 s88, v28
    s_cmp_lg_u32 s88, 31
    s_cbranch_scc1 L_end
    """)
    for i in range(32):
        if i % 2 == 0: a(f"s_mov_b32 s88, {i * 2048}")
        a(f"buffer_load_dwordx4 v[{BUF+4*i}:{BUF+4*i+3}], v29, s[72:75], s88 offen offset:{(i % 2) * 2048} sc1")
    for i in range(32):
        a(f"s_waitcnt vmcnt({31 - i})")
        if i == 0:
            continue
        for r in range(4):
            src = BUF + r if i == 1 else 20 + r
            a(f"v_add_f32 v{20+r}, v{src}, v{BUF+4*i+r}")
    a("""
    v_cvt_pk_bf16_f32 v24, v20, v21
    v_cvt_pk_bf16_f32 v25, v22, v23
    v_lshlrev_b32 v20, 16, v24
    v_and_b32 v21, 0xffff0000, v24
    v_lshlrev_b32 v22, 16, v25
    v_and_b32 v23, 0xffff0000, v25
    v_lshlrev_b32 v40, 16, v52
    v_and_b32 v41, 0xffff0000, v52
    v_lshlrev_b32 v42, 16, v53
    v_and_b32 v43, 0xffff0000, v53
    v_add_f32 v20, v20, v40
    v_add_f32 v21, v21, v41
    v_add_f32 v22, v22, v42
    v_add_f32 v23, v23, v43
    v_cvt_pk_bf16_f32 v24, v20, v21
    v_cvt_pk_bf16_f32 v25, v22, v23
    v_mov_b32 v26, v24
    v_mov_b32 v27, v25
    v_permlane32_swap_b32 v24, v26
    v_permlane32_swap_b32 v25, v27
    v_lshlrev_b32 v20, 16, v24
    v_and_b32 v21, 0xffff0000, v24
    v_lshlrev_b32 v22, 16, v25
    v_and_b32 v23, 0xffff0000, v25
    v_lshlrev_b32 v40, 16, v26
    v_and_b32 v41, 0xffff0000, v26
    v_lshlrev_b32 v42, 16, v27
    v_and_b32 v43, 0xffff0000, v27
    v_add_f32 v20, v20, v40
    v_add_f32 v21, v21, v41
    v_add_f32 v22, v22, v42
    v_add_f32 v23, v23, v43
    v_cvt_pk_bf16_f32 v24, v20, v21
    v_cvt_pk_bf16_f32 v25, v22, v23
    s_mov_b32 exec_hi, 0
    buffer_store_dwordx2 v[24:25], v51, s[76:79], 0 offen
    """)
    a.label("L_end")
    a("s_endpgm")
    out = HEADER
    out += "; Generated by work/gen/gen_v1.py (hand-written generator)\n"
    out += f"; @launch grid=(256,1,1) block=(512,1,1) lds={LDS_BYTES}\n"
    out += '.amdgcn_target "amdgcn-amd-amdhsa--gfx950"\n.text\n'
    out += f".globl {K}\n.p2align 8\n.type {K},@function\n{K}:\n"
    out += a.text()
    out += f""".section .rodata,"a"
.p2align 6
.amdhsa_kernel {K}
  .amdhsa_next_free_vgpr 256
  .amdhsa_next_free_sgpr 96
  .amdhsa_accum_offset 256
  .amdhsa_group_segment_fixed_size 0
  .amdhsa_kernarg_size 104
  .amdhsa_user_sgpr_count 2
  .amdhsa_user_sgpr_kernarg_segment_ptr 1
  .amdhsa_system_sgpr_workgroup_id_x 1
  .amdhsa_float_denorm_mode_32 3
.end_amdhsa_kernel
"""
    return out

if __name__ == "__main__":
    import argparse
    p = argparse.ArgumentParser()
    p.add_argument("-o", default=f"cdna_kernels/{NAME}.s")
    p.add_argument("-D", type=int, default=6)
    args = p.parse_args()
    open(args.o, "w").write(gen(D=args.D))
    print("wrote", args.o)
```
